```python
import torch

def _softmax(x, axis=-1):
    return torch.softmax(x, dim=axis)
def _gelu(x):
    return torch.nn.functional.gelu(x, approximate="tanh")
def _silu(x):
    return torch.nn.functional.silu(x)
def _sigmoid(x):
    return torch.sigmoid(x)
def _layernorm(x, axis=-1, eps=1e-5):
    m = x.mean(dim=axis, keepdim=True)
    v = x.var(dim=axis, keepdim=True, unbiased=False)
    return (x - m) / torch.sqrt(v + eps)
def _scatter_add(tgt, idx, src, axis=0):
    return tgt.clone().index_add_(axis, idx, src)
def _segment_sum(src, seg, n):
    out = torch.zeros((n,) + src.shape[1:], dtype=src.dtype)
    return out.index_add_(0, seg, src)
def _pad(x, pw):
    flat = tuple(v for pair in reversed(pw) for v in pair)
    return torch.nn.functional.pad(x, flat)

kernel_name = 'standalone__instancenorm__prompt'

def setup_inputs():

    _w = (lambda a: (lambda t: t.to(torch.bfloat16) if t.is_floating_point() else t)(torch.as_tensor(a)))
    B, C, H, W = 2, 448, 2048, 16
    return {
        "x": _w(abs((lambda *s: torch.randn(*s, dtype=torch.bfloat16) * 0.05)(B, C, H, W))),
        "g": _w((lambda *s: torch.randn(*s, dtype=torch.bfloat16) * 0.05)(C) + 1.0),
        "b": _w((lambda *s: torch.randn(*s, dtype=torch.bfloat16) * 0.4)(C)),
    }

def reference(x, g, b):
    mu = x.mean(axis=(-2, -1), keepdims=True)
    var = ((x - mu) ** 2).mean(axis=(-2, -1), keepdims=True)
    xhat = (x - mu) / torch.sqrt(var + 1e-5)
    return xhat * g.reshape(1, -1, 1, 1) + b.reshape(1, -1, 1, 1)
```

```python
import sys

N_INST = 896
C = 448
INST_BYTES = 65536
TOTAL_BYTES = N_INST * INST_BYTES

def gen(use_pk=True, debug=False):
    L = []
    A = L.append
    dbgn = [0]
    def dbg_store(vreg, slot):
        if not debug:
            return
        n = dbgn[0]; dbgn[0] += 1
        A("    s_cmp_eq_u32 s2, 0")
        A("    s_cbranch_scc0 L_dbg_skip_%d" % n)
        A("    v_cmp_eq_u32 vcc, 0, v0")
        A("    s_and_saveexec_b64 s[38:39], vcc")
        A("    v_mov_b32 v15, %d" % (slot * 4))
        A("    buffer_store_dword v%d, v15, s[40:43], 0 offen" % vreg)
        A("    s_mov_b64 exec, s[38:39]")
        A("L_dbg_skip_%d:" % n)
    A(";   offset  32: d_debug   256 bytes")
    A("; @launch grid=(%d,1,1) block=(256,1,1) lds=64" % N_INST)
    A('.amdgcn_target "amdgcn-amd-amdhsa--gfx950"')
    A(".text")
    A(".globl standalone__instancenorm__prompt_kernel")
    A(".p2align 8")
    A(".type standalone__instancenorm__prompt_kernel,@function")
    A("standalone__instancenorm__prompt_kernel:")
    A("    s_cmp_ge_u32 s2, %d" % N_INST)
    A("    s_cbranch_scc1 L_end")
    A("    s_load_dwordx4 s[4:7], s[0:1], 0      ; x, g")
    A("    s_load_dwordx4 s[8:11], s[0:1], 16    ; b, out")
    if debug:
        A("    s_load_dwordx2 s[36:37], s[0:1], 32   ; d_debug")
    A("    v_lshrrev_b32 v10, 6, v0")
    A("    v_and_b32 v11, 63, v0                 ; lane")
    A("    v_lshlrev_b32 v1, 14, v10             ; wave*16384")
    A("    v_lshl_add_u32 v1, v11, 4, v1")
    A("    v_lshlrev_b32 v12, 2, v10")
    A("    v_mov_b32 v13, 0")
    A("    s_mov_b32 s30, 0xffff0000")
    A("    s_mov_b32 s31, 0x3f803f80             ; bf16 (1.0, 1.0)")
    A("    s_sub_u32 s24, s2, %d" % C)
    A("    s_cmp_ge_u32 s2, %d" % C)
    A("    s_cselect_b32 s24, s24, s2")
    A("    s_and_b32 s25, s24, 0xfffffffe")
    A("    s_lshl_b32 s25, s25, 1")
    A("    s_lshl_b32 s20, s2, 16                ; wg*65536")
    A("    s_add_u32 s21, s20, 4096")
    A("    s_add_u32 s22, s20, 8192")
    A("    s_add_u32 s23, s20, 12288")
    A("    s_waitcnt lgkmcnt(0)")
    A("    s_mov_b32 s12, s4")
    A("    s_mov_b32 s13, s5")
    A("    s_mov_b32 s14, 0x%x" % TOTAL_BYTES)
    A("    s_mov_b32 s15, 0x00020000")
    A("    s_mov_b32 s16, s10")
    A("    s_mov_b32 s17, s11")
    A("    s_mov_b32 s18, 0x%x" % TOTAL_BYTES)
    A("    s_mov_b32 s19, 0x00020000")
    if debug:
        A("    s_mov_b32 s40, s36")
        A("    s_mov_b32 s41, s37")
        A("    s_mov_b32 s42, 256")
        A("    s_mov_b32 s43, 0x00020000")
    A("    s_load_dword s26, s[6:7], s25         ; g pair")
    A("    s_load_dword s27, s[8:9], s25         ; b pair")
    D0 = 16
    for i in range(16):
        A("    buffer_load_dwordx4 v[%d:%d], v1, s[12:15], s%d offen offset:%d"
          % (D0 + 4 * i, D0 + 4 * i + 3, 20 + i // 4, (i % 4) * 1024))
    for j in range(4):
        A("    v_mov_b32 v%d, 0" % (2 + j))
    A("    v_mov_b32 v14, s31")
    for i in range(16):
        A("    s_waitcnt vmcnt(%d)" % (15 - i))
        for j in range(4):
            A("    v_dot2c_f32_bf16 v%d, v%d, v14" % (2 + j, D0 + 4 * i + j))
    A("    s_nop 3")
    A("    v_add_f32 v2, v2, v3")
    A("    v_add_f32 v4, v4, v5")
    A("    v_add_f32 v2, v2, v4")

    def wg_reduce(off):
        A("    s_nop 1")
        A("    v_add_f32_dpp v2, v2, v2 quad_perm:[1,0,3,2] row_mask:0xf bank_mask:0xf")
        A("    s_nop 1")
        A("    v_add_f32_dpp v2, v2, v2 quad_perm:[2,3,0,1] row_mask:0xf bank_mask:0xf")
        A("    s_nop 1")
        A("    v_add_f32_dpp v2, v2, v2 row_half_mirror row_mask:0xf bank_mask:0xf")
        A("    s_nop 1")
        A("    v_add_f32_dpp v2, v2, v2 row_mirror row_mask:0xf bank_mask:0xf")
        A("    s_nop 1")
        A("    v_add_f32_dpp v2, v2, v2 row_bcast:15 row_mask:0xa bank_mask:0xf")
        A("    s_nop 1")
        A("    v_add_f32_dpp v2, v2, v2 row_bcast:31 row_mask:0xc bank_mask:0xf")
        A("    s_mov_b32 exec_lo, 0")
        A("    s_mov_b32 exec_hi, 0x80000000")
        A("    ds_write_b32 v12, v2 offset:%d" % off)
        A("    s_mov_b64 exec, -1")
        A("    s_waitcnt lgkmcnt(0)")
        A("    s_barrier")
        A("    ds_read_b128 v[4:7], v13 offset:%d" % off)
        A("    s_waitcnt lgkmcnt(0)")
        A("    v_add_f32 v4, v4, v5")
        A("    v_add_f32 v6, v6, v7")
        A("    v_add_f32 v2, v4, v6")

    dbg_store(2, 0)
    wg_reduce(0)
    dbg_store(2, 1)
    A("    v_mul_f32 v2, 0x38000000, v2          ; /32768")
    A("    v_cvt_pk_bf16_f32 v3, v2, v2")
    A("    v_and_b32 v8, s30, v3")
    A("    v_xor_b32 v8, 0x80000000, v8          ; -mu")
    A("    v_mov_b32 v9, v8")
    for j in range(4):
        A("    v_mov_b32 v%d, 0" % (2 + j))
    T = 80
    for i in range(16):
        d = [D0 + 4 * i + j for j in range(4)]
        for j in range(4):
            A("    v_lshlrev_b32 v%d, 16, v%d" % (T + 2 * j, d[j]))
            A("    v_and_b32 v%d, s30, v%d" % (T + 2 * j + 1, d[j]))
        for j in range(4):
            if use_pk:
                A("    v_pk_add_f32 v[%d:%d], v[%d:%d], v[8:9]" % (T + 2 * j, T + 2 * j + 1, T + 2 * j, T + 2 * j + 1))
            else:
                A("    v_add_f32 v%d, v%d, v8" % (T + 2 * j, T + 2 * j))
                A("    v_add_f32 v%d, v%d, v8" % (T + 2 * j + 1, T + 2 * j + 1))
        for j in range(4):
            A("    v_cvt_pk_bf16_f32 v%d, v%d, v%d" % (d[j], T + 2 * j, T + 2 * j + 1))
        for j in range(4):
            A("    v_dot2c_f32_bf16 v%d, v%d, v%d" % (2 + j, d[j], d[j]))
    A("    s_nop 3")
    A("    v_add_f32 v2, v2, v3")
    A("    v_add_f32 v4, v4, v5")
    A("    v_add_f32 v2, v2, v4")
    dbg_store(2, 2)
    wg_reduce(16)
    dbg_store(2, 3)
    A("    v_mul_f32 v2, 0x38000000, v2")
    A("    v_cvt_pk_bf16_f32 v3, v2, v2")
    A("    v_and_b32 v2, s30, v3")
    A("    v_add_f32 v2, 0x3727c5ac, v2          ; + 1e-5")
    A("    v_cvt_pk_bf16_f32 v3, v2, v2")
    A("    v_and_b32 v2, s30, v3")
    A("    v_sqrt_f32 v2, v2")
    A("    s_nop 0")
    A("    v_cvt_pk_bf16_f32 v3, v2, v2")
    A("    v_and_b32 v2, s30, v3")
    A("    v_rcp_f32 v8, v2")
    A("    s_nop 0")
    A("    v_mov_b32 v9, v8                      ; v[8:9] = 1/s")
    dbg_store(8, 4)
    A("    s_waitcnt lgkmcnt(0)")
    A("    s_and_b32 s28, s24, 1")
    A("    s_lshl_b32 s28, s28, 4                ; 0 or 16")
    A("    s_lshr_b32 s26, s26, s28")
    A("    s_lshr_b32 s27, s27, s28")
    A("    s_lshl_b32 s26, s26, 16               ; g as f32")
    A("    s_lshl_b32 s27, s27, 16               ; b as f32")
    A("    v_mov_b32 v2, s26")
    A("    v_mov_b32 v3, s26")
    A("    v_mov_b32 v4, s27")
    A("    v_mov_b32 v5, s27")
    for i in range(16):
        d = [D0 + 4 * i + j for j in range(4)]
        def unpack():
            for j in range(4):
                A("    v_lshlrev_b32 v%d, 16, v%d" % (T + 2 * j, d[j]))
                A("    v_and_b32 v%d, s30, v%d" % (T + 2 * j + 1, d[j]))
        def cvt():
            for j in range(4):
                A("    v_cvt_pk_bf16_f32 v%d, v%d, v%d" % (d[j], T + 2 * j, T + 2 * j + 1))
        def op(name, src):
            for j in range(4):
                if use_pk:
                    A("    v_pk_%s_f32 v[%d:%d], v[%d:%d], v[%d:%d]" % (name, T + 2 * j, T + 2 * j + 1, T + 2 * j, T + 2 * j + 1, src, src + 1))
                else:
                    A("    v_%s_f32 v%d, v%d, v%d" % (name, T + 2 * j, T + 2 * j, src))
                    A("    v_%s_f32 v%d, v%d, v%d" % (name, T + 2 * j + 1, T + 2 * j + 1, src))
        unpack(); op("mul", 8); cvt()
        unpack(); op("mul", 2); cvt()
        unpack(); op("add", 4); cvt()
        A("    buffer_store_dwordx4 v[%d:%d], v1, s[16:19], s%d offen offset:%d"
          % (d[0], d[3], 20 + i // 4, (i % 4) * 1024))
    A("L_end:")
    A("    s_endpgm")
    A('.section .rodata,"a"')
    A(".p2align 6")
    A(".amdhsa_kernel standalone__instancenorm__prompt_kernel")
    A("  .amdhsa_next_free_vgpr 88")
    A("  .amdhsa_next_free_sgpr 48")
    A("  .amdhsa_accum_offset 88")
    A("  .amdhsa_group_segment_fixed_size 0")
    A("  .amdhsa_kernarg_size 48")
    A("  .amdhsa_user_sgpr_count 2")
    A("  .amdhsa_user_sgpr_kernarg_segment_ptr 1")
    A("  .amdhsa_system_sgpr_workgroup_id_x 1")
    A("  .amdhsa_float_denorm_mode_32 3")
    A(".end_amdhsa_kernel")
    return "\n".join(L) + "\n"

if __name__ == "__main__":
    out = sys.argv[1] if len(sys.argv) > 1 else "standalone__instancenorm__prompt.s"
    use_pk = "nopk" not in sys.argv[2:]
    open(out, "w").write(gen(use_pk, "debug" in sys.argv[2:]))
```

```python
import sys

N_INST = 896
C = 448
INST_BYTES = 65536
TOTAL_BYTES = N_INST * INST_BYTES

def gen(use_pk=True, debug=False, ldpol="", stpol=""):
    L = []
    A = L.append
    dbgn = [0]
    def dbg_store(vreg, slot):
        if not debug:
            return
        n = dbgn[0]; dbgn[0] += 1
        A("    s_cmp_eq_u32 s2, 0")
        A("    s_cbranch_scc0 L_dbg_skip_%d" % n)
        A("    v_cmp_eq_u32 vcc, 0, v0")
        A("    s_and_saveexec_b64 s[38:39], vcc")
        A("    v_mov_b32 v15, %d" % (slot * 4))
        A("    buffer_store_dword v%d, v15, s[40:43], 0 offen" % vreg)
        A("    s_mov_b64 exec, s[38:39]")
        A("L_dbg_skip_%d:" % n)
    A(";   offset  32: d_debug   256 bytes")
    A("; @launch grid=(%d,1,1) block=(256,1,1) lds=64" % N_INST)
    A('.amdgcn_target "amdgcn-amd-amdhsa--gfx950"')
    A(".text")
    A(".globl standalone__instancenorm__prompt_kernel")
    A(".p2align 8")
    A(".type standalone__instancenorm__prompt_kernel,@function")
    A("standalone__instancenorm__prompt_kernel:")
    A("    s_cmp_ge_u32 s2, %d" % N_INST)
    A("    s_cbranch_scc1 L_end")
    A("    s_load_dwordx4 s[4:7], s[0:1], 0      ; x, g")
    A("    s_load_dwordx4 s[8:11], s[0:1], 16    ; b, out")
    if debug:
        A("    s_load_dwordx2 s[36:37], s[0:1], 32   ; d_debug")
    A("    v_lshrrev_b32 v10, 6, v0")
    A("    v_and_b32 v11, 63, v0                 ; lane")
    A("    v_lshlrev_b32 v1, 14, v10             ; wave*16384")
    A("    v_lshl_add_u32 v1, v11, 4, v1")
    A("    v_lshlrev_b32 v12, 2, v10")
    A("    v_mov_b32 v13, 0")
    A("    s_mov_b32 s30, 0xffff0000")
    A("    s_mov_b32 s31, 0x3f803f80             ; bf16 (1.0, 1.0)")
    A("    s_sub_u32 s24, s2, %d" % C)
    A("    s_cmp_ge_u32 s2, %d" % C)
    A("    s_cselect_b32 s24, s24, s2")
    A("    s_and_b32 s25, s24, 0xfffffffe")
    A("    s_lshl_b32 s25, s25, 1")
    A("    s_lshl_b32 s20, s2, 16                ; wg*65536")
    A("    s_add_u32 s21, s20, 4096")
    A("    s_add_u32 s22, s20, 8192")
    A("    s_add_u32 s23, s20, 12288")
    A("    s_waitcnt lgkmcnt(0)")
    A("    s_mov_b32 s12, s4")
    A("    s_mov_b32 s13, s5")
    A("    s_mov_b32 s14, 0x%x" % TOTAL_BYTES)
    A("    s_mov_b32 s15, 0x00020000")
    A("    s_mov_b32 s16, s10")
    A("    s_mov_b32 s17, s11")
    A("    s_mov_b32 s18, 0x%x" % TOTAL_BYTES)
    A("    s_mov_b32 s19, 0x00020000")
    if debug:
        A("    s_mov_b32 s40, s36")
        A("    s_mov_b32 s41, s37")
        A("    s_mov_b32 s42, 256")
        A("    s_mov_b32 s43, 0x00020000")
    A("    s_load_dword s26, s[6:7], s25         ; g pair")
    A("    s_load_dword s27, s[8:9], s25         ; b pair")
    D0 = 16
    for i in range(16):
        A("    buffer_load_dwordx4 v[%d:%d], v1, s[12:15], s%d offen offset:%d %s"
          % (D0 + 4 * i, D0 + 4 * i + 3, 20 + i // 4, (i % 4) * 1024, ldpol))
    for j in range(4):
        A("    v_mov_b32 v%d, 0" % (2 + j))
    A("    v_mov_b32 v14, s31")
    for i in range(16):
        A("    s_waitcnt vmcnt(%d)" % (15 - i))
        for j in range(4):
            A("    v_dot2c_f32_bf16 v%d, v%d, v14" % (2 + j, D0 + 4 * i + j))
    A("    s_nop 3")
    A("    v_add_f32 v2, v2, v3")
    A("    v_add_f32 v4, v4, v5")
    A("    v_add_f32 v2, v2, v4")

    def wg_reduce(off):
        A("    s_nop 1")
        A("    v_add_f32_dpp v2, v2, v2 quad_perm:[1,0,3,2] row_mask:0xf bank_mask:0xf")
        A("    s_nop 1")
        A("    v_add_f32_dpp v2, v2, v2 quad_perm:[2,3,0,1] row_mask:0xf bank_mask:0xf")
        A("    s_nop 1")
        A("    v_add_f32_dpp v2, v2, v2 row_half_mirror row_mask:0xf bank_mask:0xf")
        A("    s_nop 1")
        A("    v_add_f32_dpp v2, v2, v2 row_mirror row_mask:0xf bank_mask:0xf")
        A("    s_nop 1")
        A("    v_add_f32_dpp v2, v2, v2 row_bcast:15 row_mask:0xa bank_mask:0xf")
        A("    s_nop 1")
        A("    v_add_f32_dpp v2, v2, v2 row_bcast:31 row_mask:0xc bank_mask:0xf")
        A("    s_mov_b32 exec_lo, 0")
        A("    s_mov_b32 exec_hi, 0x80000000")
        A("    ds_write_b32 v12, v2 offset:%d" % off)
        A("    s_mov_b64 exec, -1")
        A("    s_waitcnt lgkmcnt(0)")
        A("    s_barrier")
        A("    ds_read_b128 v[4:7], v13 offset:%d" % off)
        A("    s_waitcnt lgkmcnt(0)")
        A("    v_add_f32 v4, v4, v5")
        A("    v_add_f32 v6, v6, v7")
        A("    v_add_f32 v2, v4, v6")

    dbg_store(2, 0)
    wg_reduce(0)
    dbg_store(2, 1)
    A("    v_mul_f32 v2, 0x38000000, v2          ; /32768")
    A("    v_cvt_pk_bf16_f32 v3, v2, v2")
    A("    v_and_b32 v8, s30, v3")
    A("    v_xor_b32 v8, 0x80000000, v8          ; -mu")
    A("    v_mov_b32 v9, v8")
    for j in range(4):
        A("    v_mov_b32 v%d, 0" % (2 + j))
    T = 80
    for i in range(16):
        d = [D0 + 4 * i + j for j in range(4)]
        for j in range(4):
            A("    v_lshlrev_b32 v%d, 16, v%d" % (T + 2 * j, d[j]))
            A("    v_and_b32 v%d, s30, v%d" % (T + 2 * j + 1, d[j]))
        for j in range(4):
            if use_pk:
                A("    v_pk_add_f32 v[%d:%d], v[%d:%d], v[8:9]" % (T + 2 * j, T + 2 * j + 1, T + 2 * j, T + 2 * j + 1))
            else:
                A("    v_add_f32 v%d, v%d, v8" % (T + 2 * j, T + 2 * j))
                A("    v_add_f32 v%d, v%d, v8" % (T + 2 * j + 1, T + 2 * j + 1))
        for j in range(4):
            A("    v_cvt_pk_bf16_f32 v%d, v%d, v%d" % (d[j], T + 2 * j, T + 2 * j + 1))
        for j in range(4):
            A("    v_dot2c_f32_bf16 v%d, v%d, v%d" % (2 + j, d[j], d[j]))
    A("    s_nop 3")
    A("    v_add_f32 v2, v2, v3")
    A("    v_add_f32 v4, v4, v5")
    A("    v_add_f32 v2, v2, v4")
    dbg_store(2, 2)
    wg_reduce(16)
    dbg_store(2, 3)
    A("    v_mul_f32 v2, 0x38000000, v2")
    A("    v_cvt_pk_bf16_f32 v3, v2, v2")
    A("    v_and_b32 v2, s30, v3")
    A("    v_add_f32 v2, 0x3727c5ac, v2          ; + 1e-5")
    A("    v_cvt_pk_bf16_f32 v3, v2, v2")
    A("    v_and_b32 v2, s30, v3")
    A("    v_sqrt_f32 v2, v2")
    A("    s_nop 0")
    A("    v_cvt_pk_bf16_f32 v3, v2, v2")
    A("    v_and_b32 v2, s30, v3")
    A("    v_rcp_f32 v8, v2")
    A("    s_nop 0")
    A("    v_mov_b32 v9, v8                      ; v[8:9] = 1/s")
    dbg_store(8, 4)
    A("    s_waitcnt lgkmcnt(0)")
    A("    s_and_b32 s28, s24, 1")
    A("    s_lshl_b32 s28, s28, 4                ; 0 or 16")
    A("    s_lshr_b32 s26, s26, s28")
    A("    s_lshr_b32 s27, s27, s28")
    A("    s_lshl_b32 s26, s26, 16               ; g as f32")
    A("    s_lshl_b32 s27, s27, 16               ; b as f32")
    A("    v_mov_b32 v2, s26")
    A("    v_mov_b32 v3, s26")
    A("    v_mov_b32 v4, s27")
    A("    v_mov_b32 v5, s27")
    for i in range(16):
        d = [D0 + 4 * i + j for j in range(4)]
        def unpack():
            for j in range(4):
                A("    v_lshlrev_b32 v%d, 16, v%d" % (T + 2 * j, d[j]))
                A("    v_and_b32 v%d, s30, v%d" % (T + 2 * j + 1, d[j]))
        def cvt():
            for j in range(4):
                A("    v_cvt_pk_bf16_f32 v%d, v%d, v%d" % (d[j], T + 2 * j, T + 2 * j + 1))
        def op(name, src):
            for j in range(4):
                if use_pk:
                    A("    v_pk_%s_f32 v[%d:%d], v[%d:%d], v[%d:%d]" % (name, T + 2 * j, T + 2 * j + 1, T + 2 * j, T + 2 * j + 1, src, src + 1))
                else:
                    A("    v_%s_f32 v%d, v%d, v%d" % (name, T + 2 * j, T + 2 * j, src))
                    A("    v_%s_f32 v%d, v%d, v%d" % (name, T + 2 * j + 1, T + 2 * j + 1, src))
        unpack(); op("mul", 8); cvt()
        unpack(); op("mul", 2); cvt()
        unpack(); op("add", 4); cvt()
        A("    buffer_store_dwordx4 v[%d:%d], v1, s[16:19], s%d offen offset:%d %s"
          % (d[0], d[3], 20 + i // 4, (i % 4) * 1024, stpol))
    A("L_end:")
    A("    s_endpgm")
    A('.section .rodata,"a"')
    A(".p2align 6")
    A(".amdhsa_kernel standalone__instancenorm__prompt_kernel")
    A("  .amdhsa_next_free_vgpr 88")
    A("  .amdhsa_next_free_sgpr 48")
    A("  .amdhsa_accum_offset 88")
    A("  .amdhsa_group_segment_fixed_size 0")
    A("  .amdhsa_kernarg_size 48")
    A("  .amdhsa_user_sgpr_count 2")
    A("  .amdhsa_user_sgpr_kernarg_segment_ptr 1")
    A("  .amdhsa_system_sgpr_workgroup_id_x 1")
    A("  .amdhsa_float_denorm_mode_32 3")
    A(".end_amdhsa_kernel")
    return "\n".join(L) + "\n"

if __name__ == "__main__":
    out = sys.argv[1] if len(sys.argv) > 1 else "standalone__instancenorm__prompt.s"
    use_pk = "nopk" not in sys.argv[2:]
    ldpol = "nt" if "ldnt" in sys.argv[2:] else ""
    stpol = "nt" if "stnt" in sys.argv[2:] else ""
    open(out, "w").write(gen(use_pk, "debug" in sys.argv[2:], ldpol, stpol))
```

```python
import sys

N_INST = 896
C = 448
INST_BYTES = 65536
TOTAL_BYTES = N_INST * INST_BYTES

def gen(use_pk=True, debug=False, ldpol="", stpol="", stamp=False):
    L = []
    A = L.append
    dbgn = [0]
    def dbg_store(vreg, slot):
        if not debug:
            return
        n = dbgn[0]; dbgn[0] += 1
        A("    s_cmp_eq_u32 s2, 0")
        A("    s_cbranch_scc0 L_dbg_skip_%d" % n)
        A("    v_cmp_eq_u32 vcc, 0, v0")
        A("    s_and_saveexec_b64 s[38:39], vcc")
        A("    v_mov_b32 v15, %d" % (slot * 4))
        A("    buffer_store_dword v%d, v15, s[40:43], 0 offen" % vreg)
        A("    s_mov_b64 exec, s[38:39]")
        A("L_dbg_skip_%d:" % n)
    A(";   offset  32: d_debug   256 bytes")
    A("; @launch grid=(%d,1,1) block=(256,1,1) lds=64" % N_INST)
    A('.amdgcn_target "amdgcn-amd-amdhsa--gfx950"')
    A(".text")
    A(".globl standalone__instancenorm__prompt_kernel")
    A(".p2align 8")
    A(".type standalone__instancenorm__prompt_kernel,@function")
    A("standalone__instancenorm__prompt_kernel:")
    A("    s_cmp_ge_u32 s2, %d" % N_INST)
    A("    s_cbranch_scc1 L_end")
    A("    s_load_dwordx4 s[4:7], s[0:1], 0      ; x, g")
    A("    s_load_dwordx4 s[8:11], s[0:1], 16    ; b, out")
    if debug or stamp:
        A("    s_load_dwordx2 s[36:37], s[0:1], 32   ; d_debug")
    if stamp:
        A("    s_memrealtime s[44:45]")
    A("    v_lshrrev_b32 v10, 6, v0")
    A("    v_and_b32 v11, 63, v0                 ; lane")
    A("    v_lshlrev_b32 v1, 14, v10             ; wave*16384")
    A("    v_lshl_add_u32 v1, v11, 4, v1")
    A("    v_lshlrev_b32 v12, 2, v10")
    A("    v_mov_b32 v13, 0")
    A("    s_mov_b32 s30, 0xffff0000")
    A("    s_mov_b32 s31, 0x3f803f80             ; bf16 (1.0, 1.0)")
    A("    s_sub_u32 s24, s2, %d" % C)
    A("    s_cmp_ge_u32 s2, %d" % C)
    A("    s_cselect_b32 s24, s24, s2")
    A("    s_and_b32 s25, s24, 0xfffffffe")
    A("    s_lshl_b32 s25, s25, 1")
    A("    s_lshl_b32 s20, s2, 16                ; wg*65536")
    A("    s_add_u32 s21, s20, 4096")
    A("    s_add_u32 s22, s20, 8192")
    A("    s_add_u32 s23, s20, 12288")
    A("    s_waitcnt lgkmcnt(0)")
    A("    s_mov_b32 s12, s4")
    A("    s_mov_b32 s13, s5")
    A("    s_mov_b32 s14, 0x%x" % TOTAL_BYTES)
    A("    s_mov_b32 s15, 0x00020000")
    A("    s_mov_b32 s16, s10")
    A("    s_mov_b32 s17, s11")
    A("    s_mov_b32 s18, 0x%x" % TOTAL_BYTES)
    A("    s_mov_b32 s19, 0x00020000")
    if debug or stamp:
        A("    s_mov_b32 s40, s36")
        A("    s_mov_b32 s41, s37")
        A("    s_mov_b32 s42, 256")
        A("    s_mov_b32 s43, 0x00020000")
    A("    s_load_dword s26, s[6:7], s25         ; g pair")
    A("    s_load_dword s27, s[8:9], s25         ; b pair")
    D0 = 16
    for i in range(16):
        A("    buffer_load_dwordx4 v[%d:%d], v1, s[12:15], s%d offen offset:%d %s"
          % (D0 + 4 * i, D0 + 4 * i + 3, 20 + i // 4, (i % 4) * 1024, ldpol))
    for j in range(4):
        A("    v_mov_b32 v%d, 0" % (2 + j))
    A("    v_mov_b32 v14, s31")
    for i in range(16):
        A("    s_waitcnt vmcnt(%d)" % (15 - i))
        for j in range(4):
            A("    v_dot2c_f32_bf16 v%d, v%d, v14" % (2 + j, D0 + 4 * i + j))
    A("    s_nop 3")
    A("    v_add_f32 v2, v2, v3")
    A("    v_add_f32 v4, v4, v5")
    A("    v_add_f32 v2, v2, v4")

    def wg_reduce(off):
        A("    s_nop 1")
        A("    v_add_f32_dpp v2, v2, v2 quad_perm:[1,0,3,2] row_mask:0xf bank_mask:0xf")
        A("    s_nop 1")
        A("    v_add_f32_dpp v2, v2, v2 quad_perm:[2,3,0,1] row_mask:0xf bank_mask:0xf")
        A("    s_nop 1")
        A("    v_add_f32_dpp v2, v2, v2 row_half_mirror row_mask:0xf bank_mask:0xf")
        A("    s_nop 1")
        A("    v_add_f32_dpp v2, v2, v2 row_mirror row_mask:0xf bank_mask:0xf")
        A("    s_nop 1")
        A("    v_add_f32_dpp v2, v2, v2 row_bcast:15 row_mask:0xa bank_mask:0xf")
        A("    s_nop 1")
        A("    v_add_f32_dpp v2, v2, v2 row_bcast:31 row_mask:0xc bank_mask:0xf")
        A("    s_mov_b32 exec_lo, 0")
        A("    s_mov_b32 exec_hi, 0x80000000")
        A("    ds_write_b32 v12, v2 offset:%d" % off)
        A("    s_mov_b64 exec, -1")
        A("    s_waitcnt lgkmcnt(0)")
        A("    s_barrier")
        A("    ds_read_b128 v[4:7], v13 offset:%d" % off)
        A("    s_waitcnt lgkmcnt(0)")
        A("    v_add_f32 v4, v4, v5")
        A("    v_add_f32 v6, v6, v7")
        A("    v_add_f32 v2, v4, v6")

    dbg_store(2, 0)
    if stamp:
        A("    s_memrealtime s[46:47]")
    wg_reduce(0)
    dbg_store(2, 1)
    A("    v_mul_f32 v2, 0x38000000, v2          ; /32768")
    A("    v_cvt_pk_bf16_f32 v3, v2, v2")
    A("    v_and_b32 v8, s30, v3")
    A("    v_xor_b32 v8, 0x80000000, v8          ; -mu")
    A("    v_mov_b32 v9, v8")
    for j in range(4):
        A("    v_mov_b32 v%d, 0" % (2 + j))
    T = 80
    for i in range(16):
        d = [D0 + 4 * i + j for j in range(4)]
        for j in range(4):
            A("    v_lshlrev_b32 v%d, 16, v%d" % (T + 2 * j, d[j]))
            A("    v_and_b32 v%d, s30, v%d" % (T + 2 * j + 1, d[j]))
        for j in range(4):
            if use_pk:
                A("    v_pk_add_f32 v[%d:%d], v[%d:%d], v[8:9]" % (T + 2 * j, T + 2 * j + 1, T + 2 * j, T + 2 * j + 1))
            else:
                A("    v_add_f32 v%d, v%d, v8" % (T + 2 * j, T + 2 * j))
                A("    v_add_f32 v%d, v%d, v8" % (T + 2 * j + 1, T + 2 * j + 1))
        for j in range(4):
            A("    v_cvt_pk_bf16_f32 v%d, v%d, v%d" % (d[j], T + 2 * j, T + 2 * j + 1))
        for j in range(4):
            A("    v_dot2c_f32_bf16 v%d, v%d, v%d" % (2 + j, d[j], d[j]))
    A("    s_nop 3")
    A("    v_add_f32 v2, v2, v3")
    A("    v_add_f32 v4, v4, v5")
    A("    v_add_f32 v2, v2, v4")
    dbg_store(2, 2)
    wg_reduce(16)
    dbg_store(2, 3)
    if stamp:
        A("    s_memrealtime s[48:49]")
    A("    v_mul_f32 v2, 0x38000000, v2")
    A("    v_cvt_pk_bf16_f32 v3, v2, v2")
    A("    v_and_b32 v2, s30, v3")
    A("    v_add_f32 v2, 0x3727c5ac, v2          ; + 1e-5")
    A("    v_cvt_pk_bf16_f32 v3, v2, v2")
    A("    v_and_b32 v2, s30, v3")
    A("    v_sqrt_f32 v2, v2")
    A("    s_nop 0")
    A("    v_cvt_pk_bf16_f32 v3, v2, v2")
    A("    v_and_b32 v2, s30, v3")
    A("    v_rcp_f32 v8, v2")
    A("    s_nop 0")
    A("    v_mov_b32 v9, v8                      ; v[8:9] = 1/s")
    dbg_store(8, 4)
    A("    s_waitcnt lgkmcnt(0)")
    A("    s_and_b32 s28, s24, 1")
    A("    s_lshl_b32 s28, s28, 4                ; 0 or 16")
    A("    s_lshr_b32 s26, s26, s28")
    A("    s_lshr_b32 s27, s27, s28")
    A("    s_lshl_b32 s26, s26, 16               ; g as f32")
    A("    s_lshl_b32 s27, s27, 16               ; b as f32")
    A("    v_mov_b32 v2, s26")
    A("    v_mov_b32 v3, s26")
    A("    v_mov_b32 v4, s27")
    A("    v_mov_b32 v5, s27")
    for i in range(16):
        d = [D0 + 4 * i + j for j in range(4)]
        def unpack():
            for j in range(4):
                A("    v_lshlrev_b32 v%d, 16, v%d" % (T + 2 * j, d[j]))
                A("    v_and_b32 v%d, s30, v%d" % (T + 2 * j + 1, d[j]))
        def cvt():
            for j in range(4):
                A("    v_cvt_pk_bf16_f32 v%d, v%d, v%d" % (d[j], T + 2 * j, T + 2 * j + 1))
        def op(name, src):
            for j in range(4):
                if use_pk:
                    A("    v_pk_%s_f32 v[%d:%d], v[%d:%d], v[%d:%d]" % (name, T + 2 * j, T + 2 * j + 1, T + 2 * j, T + 2 * j + 1, src, src + 1))
                else:
                    A("    v_%s_f32 v%d, v%d, v%d" % (name, T + 2 * j, T + 2 * j, src))
                    A("    v_%s_f32 v%d, v%d, v%d" % (name, T + 2 * j + 1, T + 2 * j + 1, src))
        unpack(); op("mul", 8); cvt()
        unpack(); op("mul", 2); cvt()
        unpack(); op("add", 4); cvt()
        A("    buffer_store_dwordx4 v[%d:%d], v1, s[16:19], s%d offen offset:%d %s"
          % (d[0], d[3], 20 + i // 4, (i % 4) * 1024, stpol))
    if stamp:
        A("    s_waitcnt vmcnt(0)")
        A("    s_memrealtime s[50:51]")
        A("    s_and_b32 s52, s2, 7")
        A("    s_cmp_eq_u32 s52, 0")
        A("    s_cbranch_scc0 L_end")
        A("    v_cmp_eq_u32 vcc, 0, v0")
        A("    s_and_saveexec_b64 s[38:39], vcc")
        A("    s_cbranch_execz L_end")
        A("    s_waitcnt lgkmcnt(0)")
        def amax(sreg, slot):
            A("    v_mov_b32 v2, %s" % sreg)
            A("    v_mov_b32 v15, %d" % (slot * 4))
            A("    buffer_atomic_umax v2, v15, s[40:43], 0 offen")
        A("    s_not_b32 s52, s44"); amax("s52", 0)
        amax("s50", 1)
        amax("s46", 2)
        A("    s_not_b32 s52, s46"); amax("s52", 3)
        A("    s_sub_u32 s52, s50, s44"); amax("s52", 4)
        A("    s_not_b32 s52, s52"); amax("s52", 5)
        amax("s48", 6)
        A("    s_not_b32 s52, s48"); amax("s52", 7)
        A("    v_mov_b32 v2, 1")
        A("    v_mov_b32 v15, 32")
        A("    buffer_atomic_add v2, v15, s[40:43], 0 offen")
        A("    s_waitcnt vmcnt(0)")
    A("L_end:")
    A("    s_endpgm")
    A('.section .rodata,"a"')
    A(".p2align 6")
    A(".amdhsa_kernel standalone__instancenorm__prompt_kernel")
    A("  .amdhsa_next_free_vgpr 88")
    A("  .amdhsa_next_free_sgpr 56")
    A("  .amdhsa_accum_offset 88")
    A("  .amdhsa_group_segment_fixed_size 0")
    A("  .amdhsa_kernarg_size 48")
    A("  .amdhsa_user_sgpr_count 2")
    A("  .amdhsa_user_sgpr_kernarg_segment_ptr 1")
    A("  .amdhsa_system_sgpr_workgroup_id_x 1")
    A("  .amdhsa_float_denorm_mode_32 3")
    A(".end_amdhsa_kernel")
    return "\n".join(L) + "\n"

if __name__ == "__main__":
    out = sys.argv[1] if len(sys.argv) > 1 else "standalone__instancenorm__prompt.s"
    use_pk = "nopk" not in sys.argv[2:]
    ldpol = "nt" if "ldnt" in sys.argv[2:] else ""
    stpol = "nt" if "stnt" in sys.argv[2:] else ""
    for a in sys.argv[2:]:
        if a.startswith("ld="): ldpol = a[3:].replace("_", " ")
        if a.startswith("st="): stpol = a[3:].replace("_", " ")
    open(out, "w").write(gen(use_pk, "debug" in sys.argv[2:], ldpol, stpol, "stamp" in sys.argv[2:]))
```

```python
import sys

N_INST = 896
C = 448
INST_BYTES = 65536
TOTAL_BYTES = N_INST * INST_BYTES


def f32hex(v):
    import struct
    return "0x%08x" % struct.unpack("<I", struct.pack("<f", v))[0]


def gen(threads=512, ldpol="nt", stpol="sc1", trace=False):
    W = threads // 64
    NL = INST_BYTES // (threads * 16)
    NT = NL * 8
    NWAVE = 64 * NT
    WCHUNK = INST_BYTES // W
    D0 = 16
    T0 = D0 + 4 * NL
    NVGPR = T0 + 16
    L = []
    A = L.append
    A("; @launch grid=(%d,1,1) block=(%d,1,1) lds=64" % (N_INST, threads))
    A('.amdgcn_target "amdgcn-amd-amdhsa--gfx950"')
    A(".text")
    A(".globl standalone__instancenorm__prompt_kernel")
    A(".p2align 8")
    A(".type standalone__instancenorm__prompt_kernel,@function")
    A("standalone__instancenorm__prompt_kernel:")
    A("    s_cmp_ge_u32 s2, %d                  ; extra workgroups leave at once" % N_INST)
    A("    s_cbranch_scc1 L_end")
    A("    s_load_dwordx4 s[4:7], s[0:1], 0      ; x, g")
    A("    s_load_dwordx4 s[8:11], s[0:1], 16    ; b, out")
    if trace:
        A("    s_memrealtime s[44:45]")
    A("    v_lshrrev_b32 v12, 6, v0")
    A("    v_and_b32 v1, 63, v0                  ; lane")
    A("    v_lshlrev_b32 v1, 4, v1               ; lane*16")
    A("    v_lshl_add_u32 v1, v12, %d, v1        ; + wave*%d -> byte offset inside the instance" % (WCHUNK.bit_length() - 1, WCHUNK))
    A("    v_lshlrev_b32 v12, 3, v12")
    A("    v_mov_b32 v13, 0")
    A("    s_mov_b32 s30, 0x00003f80")
    A("    s_mov_b32 s31, 0x3f800000")
    A("    s_sub_u32 s24, s2, %d" % C)
    A("    s_cmp_ge_u32 s2, %d" % C)
    A("    s_cselect_b32 s24, s24, s2")
    A("    s_and_b32 s25, s24, 0xfffffffe")
    A("    s_lshl_b32 s25, s25, 1")
    A("    s_lshl_b32 s20, s2, 16")
    nso = (NL + 3) // 4
    for k in range(1, nso):
        A("    s_add_u32 s%d, s20, %d" % (20 + k, 4096 * k))
    A("    s_waitcnt lgkmcnt(0)")
    A("    s_mov_b32 s12, s4                     ; SRD x")
    A("    s_mov_b32 s13, s5")
    A("    s_mov_b32 s14, 0x%x" % TOTAL_BYTES)
    A("    s_mov_b32 s15, 0x00020000")
    A("    s_mov_b32 s16, s10")
    A("    s_mov_b32 s17, s11")
    A("    s_mov_b32 s18, 0x%x" % TOTAL_BYTES)
    A("    s_mov_b32 s19, 0x00020000")
    A("    s_load_dword s26, s[6:7], s25         ; g pair")
    A("    s_load_dword s27, s[8:9], s25         ; b pair")
    for i in range(NL):
        A("    buffer_load_dwordx4 v[%d:%d], v1, s[12:15], s%d offen offset:%d %s"
          % (D0 + 4 * i, D0 + 4 * i + 3, 20 + i // 4, (i % 4) * 1024, ldpol))
    A("    v_mov_b32 v3, 0                       ; S1a")
    A("    v_mov_b32 v4, 0                       ; S1b")
    A("    v_mov_b32 v5, 0                       ; S2a")
    A("    v_mov_b32 v6, 0                       ; S2b")
    A("    s_mov_b32 s29, %s             ; 1/%d" % (f32hex(1.0 / NT), NT))
    for i in range(NL):
        A("    s_waitcnt vmcnt(%d)" % (NL - 1 - i))
        if i == 0:
            A("    v_lshlrev_b32 v7, 16, v%d             ; K = first element of this thread" % D0)
            A("    v_xor_b32 v2, 0x80000000, v7          ; -K")
        for j in range(4):
            d = D0 + 4 * i + j
            A("    v_dot2_f32_bf16 v%d, v%d, s30, v2     ; lo - K" % (T0 + 2 * j, d))
            A("    v_dot2_f32_bf16 v%d, v%d, s31, v2     ; hi - K" % (T0 + 2 * j + 1, d))
        for j in range(8):
            A("    v_add_f32 v%d, v%d, v%d" % (3 + (j & 1), 3 + (j & 1), T0 + j))
            A("    v_fmac_f32 v%d, v%d, v%d" % (5 + (j & 1), T0 + j, T0 + j))
    if trace:
        A("    s_memrealtime s[46:47]")
    A("    v_add_f32 v3, v3, v4                  ; S1")
    A("    v_add_f32 v5, v5, v6                  ; S2")
    A("    v_fma_f32 v8, v3, s29, v7             ; m = K + S1/n")
    A("    v_mul_f32 v11, %s, v3         ; -S1/n" % f32hex(-1.0 / NT))
    A("    v_fma_f32 v9, v11, v3, v5             ; q = S2 - S1*S1/n")
    pats = ["quad_perm:[1,0,3,2] row_mask:0xf bank_mask:0xf",
            "quad_perm:[2,3,0,1] row_mask:0xf bank_mask:0xf",
            "row_half_mirror row_mask:0xf bank_mask:0xf",
            "row_mirror row_mask:0xf bank_mask:0xf",
            "row_bcast:15 row_mask:0xa bank_mask:0xf",
            "row_bcast:31 row_mask:0xc bank_mask:0xf"]
    n = NT
    for p in pats:
        A("    s_nop 1")
        A("    v_sub_f32_dpp v10, v8, v8 %s" % p)
        A("    v_add_f32_dpp v9, v9, v9 %s" % p)
        A("    v_mul_f32 v11, %s, v10" % f32hex(n / 2.0))
        A("    v_fma_f32 v9, v11, v10, v9")
        A("    v_fma_f32 v8, v10, 0.5, v8")
        n *= 2
    assert n == NWAVE
    A("    s_mov_b32 exec_lo, 0")
    A("    s_mov_b32 exec_hi, 0x80000000")
    A("    ds_write_b64 v12, v[8:9]")
    A("    s_mov_b64 exec, -1")
    A("    s_waitcnt lgkmcnt(0)")
    A("    s_barrier")
    for k in range(W // 2):
        A("    ds_read_b128 v[%d:%d], v13 offset:%d" % (T0 + 4 * k, T0 + 4 * k + 3, 16 * k))
    A("    s_waitcnt lgkmcnt(0)")
    ms = [T0 + 2 * k for k in range(W)]
    qs = [T0 + 2 * k + 1 for k in range(W)]
    A("    v_add_f32 v2, v%d, v%d" % (ms[0], ms[1]))
    A("    v_add_f32 v3, v%d, v%d" % (qs[0], qs[1]))
    for k in range(2, W):
        A("    v_add_f32 v2, v2, v%d" % ms[k])
        A("    v_add_f32 v3, v3, v%d" % qs[k])
    A("    v_mul_f32 v8, %s, v2          ; mean" % f32hex(1.0 / W))
    for k in range(W):
        A("    v_sub_f32 v%d, v%d, v8" % (ms[k], ms[k]))
    A("    v_mul_f32 v9, v%d, v%d" % (ms[0], ms[0]))
    for k in range(1, W):
        A("    v_fmac_f32 v9, v%d, v%d" % (ms[k], ms[k]))
    A("    v_mul_f32 v9, %s, v9          ; * elements per wave" % f32hex(float(NWAVE)))
    A("    v_add_f32 v9, v9, v3")
    A("    v_cvt_pk_bf16_f32 v2, v8, v8")
    A("    v_and_b32 v2, 0xffff0000, v2")
    A("    v_sub_f32 v3, v8, v2")
    A("    v_mul_f32 v4, 0x38000000, v9          ; M2/32768")
    A("    v_fmac_f32 v4, v3, v3")
    A("    v_max_f32 v4, 0, v4")
    A("    v_cvt_pk_bf16_f32 v4, v4, v4")
    A("    v_and_b32 v4, 0xffff0000, v4          ; bf16(var)")
    A("    v_add_f32 v4, 0x3727c5ac, v4          ; + 1e-5")
    A("    v_cvt_pk_bf16_f32 v4, v4, v4")
    A("    v_and_b32 v4, 0xffff0000, v4")
    A("    v_sqrt_f32 v4, v4")
    A("    s_nop 0")
    A("    v_cvt_pk_bf16_f32 v4, v4, v4")
    A("    v_and_b32 v4, 0xffff0000, v4")
    A("    v_rcp_f32 v5, v4")
    A("    v_xor_b32 v14, 0x80000000, v2         ; -mu_b")
    A("    s_and_b32 s28, s24, 1")
    A("    s_lshl_b32 s28, s28, 4                ; 0 or 16")
    A("    s_lshr_b32 s26, s26, s28")
    A("    s_lshr_b32 s27, s27, s28")
    A("    s_lshl_b32 s26, s26, 16               ; g as f32")
    A("    s_lshl_b32 s27, s27, 16               ; b as f32")
    A("    v_mul_f32 v15, s26, v5                ; A = g / s")
    if trace:
        A("    s_memrealtime s[48:49]")
    for i in range(NL):
        for j in range(4):
            d = D0 + 4 * i + j
            A("    v_dot2_f32_bf16 v%d, v%d, s30, v14    ; lo - mu_b" % (T0 + 2 * j, d))
            A("    v_dot2_f32_bf16 v%d, v%d, s31, v14    ; hi - mu_b" % (T0 + 2 * j + 1, d))
        for j in range(8):
            A("    v_fma_f32 v%d, v%d, v15, s27" % (T0 + j, T0 + j))
        for j in range(4):
            A("    v_cvt_pk_bf16_f32 v%d, v%d, v%d" % (D0 + 4 * i + j, T0 + 2 * j, T0 + 2 * j + 1))
        A("    buffer_store_dwordx4 v[%d:%d], v1, s[16:19], s%d offen offset:%d %s"
          % (D0 + 4 * i, D0 + 4 * i + 3, 20 + i // 4, (i % 4) * 1024, stpol))
    if trace:
        A("    s_waitcnt vmcnt(0)")
        A("    s_memrealtime s[50:51]")
        A("    v_cmp_eq_u32 vcc, 0, v0")
        A("    s_and_saveexec_b64 s[38:39], vcc")
        A("    s_cbranch_execz L_end")
        A("    s_load_dwordx2 s[36:37], s[0:1], 40   ; d_ws")
        A("    s_waitcnt lgkmcnt(0)")
        A("    s_mov_b32 s40, s36")
        A("    s_mov_b32 s41, s37")
        A("    s_mov_b32 s42, %d" % (N_INST * 16))
        A("    s_mov_b32 s43, 0x00020000")
        A("    v_mov_b32 v4, s44")
        A("    v_mov_b32 v5, s46")
        A("    v_mov_b32 v6, s48")
        A("    v_mov_b32 v7, s50")
        A("    s_lshl_b32 s52, s2, 4")
        A("    v_mov_b32 v15, s52")
        A("    buffer_store_dwordx4 v[4:7], v15, s[40:43], 0 offen")
        A("    s_waitcnt vmcnt(0)")
    A("L_end:")
    A("    s_endpgm")
    A('.section .rodata,"a"')
    A(".p2align 6")
    A(".amdhsa_kernel standalone__instancenorm__prompt_kernel")
    A("  .amdhsa_next_free_vgpr %d" % NVGPR)
    A("  .amdhsa_next_free_sgpr 56")
    A("  .amdhsa_accum_offset %d" % NVGPR)
    A("  .amdhsa_group_segment_fixed_size 0")
    A("  .amdhsa_kernarg_size 48")
    A("  .amdhsa_user_sgpr_count 2")
    A("  .amdhsa_user_sgpr_kernarg_segment_ptr 1")
    A("  .amdhsa_system_sgpr_workgroup_id_x 1")
    A("  .amdhsa_float_denorm_mode_32 3")
    A(".end_amdhsa_kernel")
    return "\n".join(L) + "\n"


if __name__ == "__main__":
    out = sys.argv[1]
    threads = 512
    ldpol, stpol = "nt", "sc1"
    for a in sys.argv[2:]:
        if a.startswith("t="): threads = int(a[2:])
        if a.startswith("ld="): ldpol = "" if a[3:] == "-" else a[3:].replace("_", " ")
        if a.startswith("st="): stpol = "" if a[3:] == "-" else a[3:].replace("_", " ")
    open(out, "w").write(gen(threads, ldpol, stpol, "trace" in sys.argv[2:]))
```

```python
import sys

N_INST = 896
C = 448
INST_BYTES = 65536
TOTAL_BYTES = N_INST * INST_BYTES


def f32hex(v):
    import struct
    return "0x%08x" % struct.unpack("<I", struct.pack("<f", v))[0]


def gen(threads=512, ldpol="nt", stpol="sc1", trace=False):
    W = threads // 64
    NL = INST_BYTES // (threads * 16)
    NT = NL * 8
    NWAVE = 64 * NT
    WCHUNK = INST_BYTES // W
    D0 = 16
    T0 = D0 + 4 * NL
    NVGPR = T0 + 16
    L = []
    A = L.append
    A("; @launch grid=(%d,1,1) block=(%d,1,1) lds=64" % (N_INST, threads))
    A('.amdgcn_target "amdgcn-amd-amdhsa--gfx950"')
    A(".text")
    A(".globl standalone__instancenorm__prompt_kernel")
    A(".p2align 8")
    A(".type standalone__instancenorm__prompt_kernel,@function")
    A("standalone__instancenorm__prompt_kernel:")
    A("    s_cmp_ge_u32 s2, %d                  ; extra workgroups leave at once" % N_INST)
    A("    s_cbranch_scc1 L_end")
    A("    s_load_dwordx4 s[4:7], s[0:1], 0      ; x, g")
    A("    s_load_dwordx4 s[8:11], s[0:1], 16    ; b, out")
    if trace:
        A("    s_memrealtime s[44:45]")
    A("    v_lshrrev_b32 v12, 6, v0")
    A("    v_and_b32 v1, 63, v0                  ; lane")
    A("    v_lshlrev_b32 v1, 4, v1               ; lane*16")
    A("    v_lshl_add_u32 v1, v12, %d, v1        ; + wave*%d -> byte offset inside the instance" % (WCHUNK.bit_length() - 1, WCHUNK))
    A("    v_lshlrev_b32 v12, 3, v12")
    A("    v_mov_b32 v13, 0")
    A("    s_mov_b32 s30, 0x00003f80")
    A("    s_mov_b32 s31, 0x3f800000")
    A("    s_sub_u32 s24, s2, %d" % C)
    A("    s_cmp_ge_u32 s2, %d" % C)
    A("    s_cselect_b32 s24, s24, s2")
    A("    s_and_b32 s25, s24, 0xfffffffe")
    A("    s_lshl_b32 s25, s25, 1")
    SO = 56
    A("    s_lshl_b32 s%d, s2, 16                ; instance byte offset" % SO)
    nso = (NL + 3) // 4
    for k in range(1, nso):
        A("    s_add_u32 s%d, s%d, %d" % (SO + k, SO, 4096 * k))
    A("    s_waitcnt lgkmcnt(0)")
    A("    s_mov_b32 s12, s4                     ; SRD x")
    A("    s_mov_b32 s13, s5")
    A("    s_mov_b32 s14, 0x%x" % TOTAL_BYTES)
    A("    s_mov_b32 s15, 0x00020000")
    A("    s_mov_b32 s16, s10")
    A("    s_mov_b32 s17, s11")
    A("    s_mov_b32 s18, 0x%x" % TOTAL_BYTES)
    A("    s_mov_b32 s19, 0x00020000")
    A("    s_load_dword s26, s[6:7], s25         ; g pair")
    A("    s_load_dword s27, s[8:9], s25         ; b pair")
    for i in range(NL):
        A("    buffer_load_dwordx4 v[%d:%d], v1, s[12:15], s%d offen offset:%d %s"
          % (D0 + 4 * i, D0 + 4 * i + 3, SO + i // 4, (i % 4) * 1024, ldpol))
    A("    v_mov_b32 v3, 0                       ; S1a")
    A("    v_mov_b32 v4, 0                       ; S1b")
    A("    v_mov_b32 v5, 0                       ; S2a")
    A("    v_mov_b32 v6, 0                       ; S2b")
    A("    s_mov_b32 s29, %s             ; 1/%d" % (f32hex(1.0 / NT), NT))
    for i in range(NL):
        A("    s_waitcnt vmcnt(%d)" % (NL - 1 - i))
        if i == 0:
            A("    v_lshlrev_b32 v7, 16, v%d             ; K = first element of this thread" % D0)
            A("    v_xor_b32 v2, 0x80000000, v7          ; -K")
        for j in range(4):
            d = D0 + 4 * i + j
            A("    v_dot2_f32_bf16 v%d, v%d, s30, v2     ; lo - K" % (T0 + 2 * j, d))
            A("    v_dot2_f32_bf16 v%d, v%d, s31, v2     ; hi - K" % (T0 + 2 * j + 1, d))
        for j in range(8):
            A("    v_add_f32 v%d, v%d, v%d" % (3 + (j & 1), 3 + (j & 1), T0 + j))
            A("    v_fmac_f32 v%d, v%d, v%d" % (5 + (j & 1), T0 + j, T0 + j))
    if trace:
        A("    s_memrealtime s[46:47]")
    A("    v_add_f32 v3, v3, v4                  ; S1")
    A("    v_add_f32 v5, v5, v6                  ; S2")
    A("    v_fma_f32 v8, v3, s29, v7             ; m = K + S1/n")
    A("    v_mul_f32 v11, %s, v3         ; -S1/n" % f32hex(-1.0 / NT))
    A("    v_fma_f32 v9, v11, v3, v5             ; q = S2 - S1*S1/n")
    pats = ["quad_perm:[1,0,3,2] row_mask:0xf bank_mask:0xf",
            "quad_perm:[2,3,0,1] row_mask:0xf bank_mask:0xf",
            "row_half_mirror row_mask:0xf bank_mask:0xf",
            "row_mirror row_mask:0xf bank_mask:0xf",
            "row_bcast:15 row_mask:0xa bank_mask:0xf",
            "row_bcast:31 row_mask:0xc bank_mask:0xf"]
    n = NT
    for p in pats:
        A("    s_nop 1")
        A("    v_sub_f32_dpp v10, v8, v8 %s" % p)
        A("    v_add_f32_dpp v9, v9, v9 %s" % p)
        A("    v_mul_f32 v11, %s, v10" % f32hex(n / 2.0))
        A("    v_fma_f32 v9, v11, v10, v9")
        A("    v_fma_f32 v8, v10, 0.5, v8")
        n *= 2
    assert n == NWAVE
    A("    s_mov_b32 exec_lo, 0")
    A("    s_mov_b32 exec_hi, 0x80000000")
    A("    ds_write_b64 v12, v[8:9]")
    A("    s_mov_b64 exec, -1")
    A("    s_waitcnt lgkmcnt(0)")
    A("    s_barrier")
    for k in range(W // 2):
        A("    ds_read_b128 v[%d:%d], v13 offset:%d" % (T0 + 4 * k, T0 + 4 * k + 3, 16 * k))
    A("    s_waitcnt lgkmcnt(0)")
    ms = [T0 + 2 * k for k in range(W)]
    qs = [T0 + 2 * k + 1 for k in range(W)]
    A("    v_add_f32 v2, v%d, v%d" % (ms[0], ms[1]))
    A("    v_add_f32 v3, v%d, v%d" % (qs[0], qs[1]))
    for k in range(2, W):
        A("    v_add_f32 v2, v2, v%d" % ms[k])
        A("    v_add_f32 v3, v3, v%d" % qs[k])
    A("    v_mul_f32 v8, %s, v2          ; mean" % f32hex(1.0 / W))
    for k in range(W):
        A("    v_sub_f32 v%d, v%d, v8" % (ms[k], ms[k]))
    A("    v_mul_f32 v9, v%d, v%d" % (ms[0], ms[0]))
    for k in range(1, W):
        A("    v_fmac_f32 v9, v%d, v%d" % (ms[k], ms[k]))
    A("    v_mul_f32 v9, %s, v9          ; * elements per wave" % f32hex(float(NWAVE)))
    A("    v_add_f32 v9, v9, v3")
    A("    v_cvt_pk_bf16_f32 v2, v8, v8")
    A("    v_and_b32 v2, 0xffff0000, v2")
    A("    v_sub_f32 v3, v8, v2")
    A("    v_mul_f32 v4, 0x38000000, v9          ; M2/32768")
    A("    v_fmac_f32 v4, v3, v3")
    A("    v_max_f32 v4, 0, v4")
    A("    v_cvt_pk_bf16_f32 v4, v4, v4")
    A("    v_and_b32 v4, 0xffff0000, v4          ; bf16(var)")
    A("    v_add_f32 v4, 0x3727c5ac, v4          ; + 1e-5")
    A("    v_cvt_pk_bf16_f32 v4, v4, v4")
    A("    v_and_b32 v4, 0xffff0000, v4")
    A("    v_sqrt_f32 v4, v4")
    A("    s_nop 0")
    A("    v_cvt_pk_bf16_f32 v4, v4, v4")
    A("    v_and_b32 v4, 0xffff0000, v4")
    A("    v_rcp_f32 v5, v4")
    A("    v_xor_b32 v14, 0x80000000, v2         ; -mu_b")
    A("    s_and_b32 s28, s24, 1")
    A("    s_lshl_b32 s28, s28, 4                ; 0 or 16")
    A("    s_lshr_b32 s26, s26, s28")
    A("    s_lshr_b32 s27, s27, s28")
    A("    s_lshl_b32 s26, s26, 16               ; g as f32")
    A("    s_lshl_b32 s27, s27, 16               ; b as f32")
    A("    v_mul_f32 v15, s26, v5                ; A = g / s")
    if trace:
        A("    s_memrealtime s[48:49]")
    for i in range(NL):
        for j in range(4):
            d = D0 + 4 * i + j
            A("    v_dot2_f32_bf16 v%d, v%d, s30, v14    ; lo - mu_b" % (T0 + 2 * j, d))
            A("    v_dot2_f32_bf16 v%d, v%d, s31, v14    ; hi - mu_b" % (T0 + 2 * j + 1, d))
        for j in range(8):
            A("    v_fma_f32 v%d, v%d, v15, s27" % (T0 + j, T0 + j))
        for j in range(4):
            A("    v_cvt_pk_bf16_f32 v%d, v%d, v%d" % (D0 + 4 * i + j, T0 + 2 * j, T0 + 2 * j + 1))
        A("    buffer_store_dwordx4 v[%d:%d], v1, s[16:19], s%d offen offset:%d %s"
          % (D0 + 4 * i, D0 + 4 * i + 3, SO + i // 4, (i % 4) * 1024, stpol))
    if trace:
        A("    s_waitcnt vmcnt(0)")
        A("    s_memrealtime s[50:51]")
        A("    v_cmp_eq_u32 vcc, 0, v0")
        A("    s_and_saveexec_b64 s[38:39], vcc")
        A("    s_cbranch_execz L_end")
        A("    s_load_dwordx2 s[36:37], s[0:1], 40   ; d_ws")
        A("    s_waitcnt lgkmcnt(0)")
        A("    s_mov_b32 s40, s36")
        A("    s_mov_b32 s41, s37")
        A("    s_mov_b32 s42, %d" % (N_INST * 16))
        A("    s_mov_b32 s43, 0x00020000")
        A("    v_mov_b32 v4, s44")
        A("    v_mov_b32 v5, s46")
        A("    v_mov_b32 v6, s48")
        A("    v_mov_b32 v7, s50")
        A("    s_lshl_b32 s52, s2, 4")
        A("    v_mov_b32 v15, s52")
        A("    buffer_store_dwordx4 v[4:7], v15, s[40:43], 0 offen")
        A("    s_waitcnt vmcnt(0)")
    A("L_end:")
    A("    s_endpgm")
    A('.section .rodata,"a"')
    A(".p2align 6")
    A(".amdhsa_kernel standalone__instancenorm__prompt_kernel")
    A("  .amdhsa_next_free_vgpr %d" % NVGPR)
    A("  .amdhsa_next_free_sgpr 64")
    A("  .amdhsa_accum_offset %d" % NVGPR)
    A("  .amdhsa_group_segment_fixed_size 0")
    A("  .amdhsa_kernarg_size 48")
    A("  .amdhsa_user_sgpr_count 2")
    A("  .amdhsa_user_sgpr_kernarg_segment_ptr 1")
    A("  .amdhsa_system_sgpr_workgroup_id_x 1")
    A("  .amdhsa_float_denorm_mode_32 3")
    A(".end_amdhsa_kernel")
    return "\n".join(L) + "\n"


if __name__ == "__main__":
    out = sys.argv[1]
    threads = 512
    ldpol, stpol = "nt", "sc1"
    for a in sys.argv[2:]:
        if a.startswith("t="): threads = int(a[2:])
        if a.startswith("ld="): ldpol = "" if a[3:] == "-" else a[3:].replace("_", " ")
        if a.startswith("st="): stpol = "" if a[3:] == "-" else a[3:].replace("_", " ")
    open(out, "w").write(gen(threads, ldpol, stpol, "trace" in sys.argv[2:]))
```

```python
import sys

N_INST = 896
C = 448
INST_BYTES = 65536
TOTAL_BYTES = N_INST * INST_BYTES


def f32hex(v):
    import struct
    return "0x%08x" % struct.unpack("<I", struct.pack("<f", v))[0]


def gen(threads=512, ldpol="nt", stpol="sc1", trace=False, keepu=False):
    W = threads // 64
    NL = INST_BYTES // (threads * 16)
    NT = NL * 8
    NWAVE = 64 * NT
    WCHUNK = INST_BYTES // W
    U0 = 16
    if keepu:
        D0 = U0 + 4 * NL
        T0 = U0 + 8 * NL
        NVGPR = T0 + 16
    else:
        D0 = 16
        T0 = D0 + 4 * NL
        NVGPR = T0 + 16
    L = []
    A = L.append
    A("; @launch grid=(%d,1,1) block=(%d,1,1) lds=64" % (N_INST, threads))
    A('.amdgcn_target "amdgcn-amd-amdhsa--gfx950"')
    A(".text")
    A(".globl standalone__instancenorm__prompt_kernel")
    A(".p2align 8")
    A(".type standalone__instancenorm__prompt_kernel,@function")
    A("standalone__instancenorm__prompt_kernel:")
    A("    s_cmp_ge_u32 s2, %d                  ; extra workgroups leave at once" % N_INST)
    A("    s_cbranch_scc1 L_end")
    A("    s_load_dwordx4 s[4:7], s[0:1], 0      ; x, g")
    A("    s_load_dwordx4 s[8:11], s[0:1], 16    ; b, out")
    if trace:
        A("    s_memrealtime s[44:45]")
    A("    v_lshrrev_b32 v12, 6, v0")
    A("    v_and_b32 v1, 63, v0                  ; lane")
    A("    v_lshlrev_b32 v1, 4, v1               ; lane*16")
    A("    v_lshl_add_u32 v1, v12, %d, v1        ; + wave*%d -> byte offset inside the instance" % (WCHUNK.bit_length() - 1, WCHUNK))
    A("    v_lshlrev_b32 v12, 3, v12")
    A("    v_mov_b32 v13, 0")
    A("    s_mov_b32 s30, 0x00003f80")
    A("    s_mov_b32 s31, 0x3f800000")
    A("    s_sub_u32 s24, s2, %d" % C)
    A("    s_cmp_ge_u32 s2, %d" % C)
    A("    s_cselect_b32 s24, s24, s2")
    A("    s_and_b32 s25, s24, 0xfffffffe")
    A("    s_lshl_b32 s25, s25, 1")
    SO = 56
    A("    s_lshl_b32 s%d, s2, 16                ; instance byte offset" % SO)
    nso = (NL + 3) // 4
    for k in range(1, nso):
        A("    s_add_u32 s%d, s%d, %d" % (SO + k, SO, 4096 * k))
    A("    s_waitcnt lgkmcnt(0)")
    A("    s_mov_b32 s12, s4                     ; SRD x")
    A("    s_mov_b32 s13, s5")
    A("    s_mov_b32 s14, 0x%x" % TOTAL_BYTES)
    A("    s_mov_b32 s15, 0x00020000")
    A("    s_mov_b32 s16, s10")
    A("    s_mov_b32 s17, s11")
    A("    s_mov_b32 s18, 0x%x" % TOTAL_BYTES)
    A("    s_mov_b32 s19, 0x00020000")
    A("    s_load_dword s26, s[6:7], s25         ; g pair")
    A("    s_load_dword s27, s[8:9], s25         ; b pair")
    for i in range(NL):
        A("    buffer_load_dwordx4 v[%d:%d], v1, s[12:15], s%d offen offset:%d %s"
          % (D0 + 4 * i, D0 + 4 * i + 3, SO + i // 4, (i % 4) * 1024, ldpol))
    A("    v_mov_b32 v3, 0                       ; S1a")
    A("    v_mov_b32 v4, 0                       ; S1b")
    A("    v_mov_b32 v5, 0                       ; S2a")
    A("    v_mov_b32 v6, 0                       ; S2b")
    A("    s_mov_b32 s29, %s             ; 1/%d" % (f32hex(1.0 / NT), NT))
    for i in range(NL):
        A("    s_waitcnt vmcnt(%d)" % (NL - 1 - i))
        if i == 0:
            A("    v_lshlrev_b32 v7, 16, v%d             ; K = first element of this thread" % D0)
            A("    v_xor_b32 v2, 0x80000000, v7          ; -K")
        ub = (U0 + 8 * i) if keepu else T0
        for j in range(4):
            d = D0 + 4 * i + j
            A("    v_dot2_f32_bf16 v%d, v%d, s30, v2     ; lo - K" % (ub + 2 * j, d))
            A("    v_dot2_f32_bf16 v%d, v%d, s31, v2     ; hi - K" % (ub + 2 * j + 1, d))
        for j in range(8):
            A("    v_add_f32 v%d, v%d, v%d" % (3 + (j & 1), 3 + (j & 1), ub + j))
            A("    v_fmac_f32 v%d, v%d, v%d" % (5 + (j & 1), ub + j, ub + j))
    if trace:
        A("    s_memrealtime s[46:47]")
    A("    v_add_f32 v3, v3, v4                  ; S1")
    A("    v_add_f32 v5, v5, v6                  ; S2")
    A("    v_fma_f32 v8, v3, s29, v7             ; m = K + S1/n")
    A("    v_mul_f32 v11, %s, v3         ; -S1/n" % f32hex(-1.0 / NT))
    A("    v_fma_f32 v9, v11, v3, v5             ; q = S2 - S1*S1/n")
    pats = ["quad_perm:[1,0,3,2] row_mask:0xf bank_mask:0xf",
            "quad_perm:[2,3,0,1] row_mask:0xf bank_mask:0xf",
            "row_half_mirror row_mask:0xf bank_mask:0xf",
            "row_mirror row_mask:0xf bank_mask:0xf",
            "row_bcast:15 row_mask:0xa bank_mask:0xf",
            "row_bcast:31 row_mask:0xc bank_mask:0xf"]
    n = NT
    for p in pats:
        A("    s_nop 1")
        A("    v_sub_f32_dpp v10, v8, v8 %s" % p)
        A("    v_add_f32_dpp v9, v9, v9 %s" % p)
        A("    v_mul_f32 v11, %s, v10" % f32hex(n / 2.0))
        A("    v_fma_f32 v9, v11, v10, v9")
        A("    v_fma_f32 v8, v10, 0.5, v8")
        n *= 2
    assert n == NWAVE
    A("    s_mov_b32 exec_lo, 0")
    A("    s_mov_b32 exec_hi, 0x80000000")
    A("    ds_write_b64 v12, v[8:9]")
    A("    s_mov_b64 exec, -1")
    A("    s_waitcnt lgkmcnt(0)")
    A("    s_barrier")
    for k in range(W // 2):
        A("    ds_read_b128 v[%d:%d], v13 offset:%d" % (T0 + 4 * k, T0 + 4 * k + 3, 16 * k))
    A("    s_waitcnt lgkmcnt(0)")
    ms = [T0 + 2 * k for k in range(W)]
    qs = [T0 + 2 * k + 1 for k in range(W)]
    A("    v_add_f32 v2, v%d, v%d" % (ms[0], ms[1]))
    A("    v_add_f32 v3, v%d, v%d" % (qs[0], qs[1]))
    for k in range(2, W):
        A("    v_add_f32 v2, v2, v%d" % ms[k])
        A("    v_add_f32 v3, v3, v%d" % qs[k])
    A("    v_mul_f32 v8, %s, v2          ; mean" % f32hex(1.0 / W))
    for k in range(W):
        A("    v_sub_f32 v%d, v%d, v8" % (ms[k], ms[k]))
    A("    v_mul_f32 v9, v%d, v%d" % (ms[0], ms[0]))
    for k in range(1, W):
        A("    v_fmac_f32 v9, v%d, v%d" % (ms[k], ms[k]))
    A("    v_mul_f32 v9, %s, v9          ; * elements per wave" % f32hex(float(NWAVE)))
    A("    v_add_f32 v9, v9, v3")
    A("    v_cvt_pk_bf16_f32 v2, v8, v8")
    A("    v_and_b32 v2, 0xffff0000, v2")
    A("    v_sub_f32 v3, v8, v2")
    A("    v_mul_f32 v4, 0x38000000, v9          ; M2/32768")
    A("    v_fmac_f32 v4, v3, v3")
    A("    v_max_f32 v4, 0, v4")
    A("    v_cvt_pk_bf16_f32 v4, v4, v4")
    A("    v_and_b32 v4, 0xffff0000, v4          ; bf16(var)")
    A("    v_add_f32 v4, 0x3727c5ac, v4          ; + 1e-5")
    A("    v_cvt_pk_bf16_f32 v4, v4, v4")
    A("    v_and_b32 v4, 0xffff0000, v4")
    A("    v_sqrt_f32 v4, v4")
    A("    s_nop 0")
    A("    v_cvt_pk_bf16_f32 v4, v4, v4")
    A("    v_and_b32 v4, 0xffff0000, v4")
    A("    v_rcp_f32 v5, v4")
    A("    v_xor_b32 v14, 0x80000000, v2         ; -mu_b")
    A("    s_and_b32 s28, s24, 1")
    A("    s_lshl_b32 s28, s28, 4                ; 0 or 16")
    A("    s_lshr_b32 s26, s26, s28")
    A("    s_lshr_b32 s27, s27, s28")
    A("    s_lshl_b32 s26, s26, 16               ; g as f32")
    A("    s_lshl_b32 s27, s27, 16               ; b as f32")
    A("    v_mul_f32 v15, s26, v5                ; A = g / s")
    if keepu:
        A("    v_sub_f32 v3, v7, v2                  ; K - mu_b")
        A("    v_fma_f32 v14, v3, v15, s27")
    if trace:
        A("    s_memrealtime s[48:49]")
    for i in range(NL):
        if keepu:
            ub = U0 + 8 * i
            for j in range(8):
                A("    v_fma_f32 v%d, v%d, v15, v14" % (ub + j, ub + j))
            ob = U0 + 4 * i
            for j in range(4):
                A("    v_cvt_pk_bf16_f32 v%d, v%d, v%d" % (ob + j, ub + 2 * j, ub + 2 * j + 1))
        else:
            for j in range(4):
                d = D0 + 4 * i + j
                A("    v_dot2_f32_bf16 v%d, v%d, s30, v14    ; lo - mu_b" % (T0 + 2 * j, d))
                A("    v_dot2_f32_bf16 v%d, v%d, s31, v14    ; hi - mu_b" % (T0 + 2 * j + 1, d))
            for j in range(8):
                A("    v_fma_f32 v%d, v%d, v15, s27" % (T0 + j, T0 + j))
            for j in range(4):
                A("    v_cvt_pk_bf16_f32 v%d, v%d, v%d" % (D0 + 4 * i + j, T0 + 2 * j, T0 + 2 * j + 1))
            ob = D0 + 4 * i
        A("    buffer_store_dwordx4 v[%d:%d], v1, s[16:19], s%d offen offset:%d %s"
          % (ob, ob + 3, SO + i // 4, (i % 4) * 1024, stpol))
    if trace:
        A("    s_waitcnt vmcnt(0)")
        A("    s_memrealtime s[50:51]")
        A("    v_cmp_eq_u32 vcc, 0, v0")
        A("    s_and_saveexec_b64 s[38:39], vcc")
        A("    s_cbranch_execz L_end")
        A("    s_load_dwordx2 s[36:37], s[0:1], 40   ; d_ws")
        A("    s_waitcnt lgkmcnt(0)")
        A("    s_mov_b32 s40, s36")
        A("    s_mov_b32 s41, s37")
        A("    s_mov_b32 s42, %d" % (N_INST * 16))
        A("    s_mov_b32 s43, 0x00020000")
        A("    v_mov_b32 v4, s44")
        A("    v_mov_b32 v5, s46")
        A("    v_mov_b32 v6, s48")
        A("    v_mov_b32 v7, s50")
        A("    s_lshl_b32 s52, s2, 4")
        A("    v_mov_b32 v15, s52")
        A("    buffer_store_dwordx4 v[4:7], v15, s[40:43], 0 offen")
        A("    s_waitcnt vmcnt(0)")
    A("L_end:")
    A("    s_endpgm")
    A('.section .rodata,"a"')
    A(".p2align 6")
    A(".amdhsa_kernel standalone__instancenorm__prompt_kernel")
    A("  .amdhsa_next_free_vgpr %d" % NVGPR)
    A("  .amdhsa_next_free_sgpr 64")
    A("  .amdhsa_accum_offset %d" % NVGPR)
    A("  .amdhsa_group_segment_fixed_size 0")
    A("  .amdhsa_kernarg_size 48")
    A("  .amdhsa_user_sgpr_count 2")
    A("  .amdhsa_user_sgpr_kernarg_segment_ptr 1")
    A("  .amdhsa_system_sgpr_workgroup_id_x 1")
    A("  .amdhsa_float_denorm_mode_32 3")
    A(".end_amdhsa_kernel")
    return "\n".join(L) + "\n"


if __name__ == "__main__":
    out = sys.argv[1]
    threads = 512
    ldpol, stpol = "nt", "sc1"
    for a in sys.argv[2:]:
        if a.startswith("t="): threads = int(a[2:])
        if a.startswith("ld="): ldpol = "" if a[3:] == "-" else a[3:].replace("_", " ")
        if a.startswith("st="): stpol = "" if a[3:] == "-" else a[3:].replace("_", " ")
    open(out, "w").write(gen(threads, ldpol, stpol, "trace" in sys.argv[2:], "keepu" in sys.argv[2:]))
```
